```python
import torch

def _softmax(x, axis=-1):
    return torch.softmax(x, dim=axis)
def _gelu(x):
    return torch.nn.functional.gelu(x, approximate="tanh")
def _silu(x):
    return torch.nn.functional.silu(x)
def _sigmoid(x):
    return torch.sigmoid(x)
def _layernorm(x, axis=-1, eps=1e-5):
    m = x.mean(dim=axis, keepdim=True)
    v = x.var(dim=axis, keepdim=True, unbiased=False)
    return (x - m) / torch.sqrt(v + eps)
def _scatter_add(tgt, idx, src, axis=0):
    return tgt.clone().index_add_(axis, idx, src)
def _segment_sum(src, seg, n):
    out = torch.zeros((n,) + src.shape[1:], dtype=src.dtype)
    return out.index_add_(0, seg, src)
def _pad(x, pw):
    flat = tuple(v for pair in reversed(pw) for v in pair)
    return torch.nn.functional.pad(x, flat)

kernel_name = 'interleave_layers__linear_kernel_hedgehog__geglu_ffn__prompt'

def setup_inputs():

    _w = (lambda a: (lambda t: t.to(torch.bfloat16) if t.is_floating_point() else t)(torch.as_tensor(a)))
    def _A_setup():
        B, S, D, H = 1, 2048, 640, 32
        Dh = D // H
        return {
            "x": _w((lambda *s: torch.randn(*s, dtype=torch.bfloat16) * 0.05)(B, S, D)),
            "wqkv": _w((lambda *s: torch.randn(*s, dtype=torch.bfloat16) * 0.2)(D, 3 * D)),
            "w_phi": _w((lambda *s: torch.randn(*s, dtype=torch.bfloat16) * 0.2)(H, Dh, Dh) * (Dh ** -0.5)),
            "wo": _w((lambda *s: torch.randn(*s, dtype=torch.bfloat16) * 0.05)(D, D)),
        }
    _A_in = _A_setup()

    def _B_setup():
        B, S, D, F = 1, 2048, 640, 1728
        return {
            "x": _w((lambda *s: torch.randn(*s, dtype=torch.bfloat16) * 0.05)(B, S, D)),
            "w_gate": _w((lambda *s: torch.randn(*s, dtype=torch.bfloat16) * 0.05)(D, F)),
            "w_up": _w((lambda *s: torch.randn(*s, dtype=torch.bfloat16) * 0.05)(D, F)),
            "w_down": _w((lambda *s: torch.randn(*s, dtype=torch.bfloat16) * 0.05)(F, D)),
        }
    _B_in = _B_setup()

    return {
        "A_x": _A_in["x"],
        "A_wqkv": _A_in["wqkv"],
        "A_w_phi": _A_in["w_phi"],
        "A_wo": _A_in["wo"],
        "B_x": _B_in["x"],
        "B_w_gate": _B_in["w_gate"],
        "B_w_up": _B_in["w_up"],
        "B_w_down": _B_in["w_down"],
    }

def reference(A_x, A_wqkv, A_w_phi, A_wo, B_x, B_w_gate, B_w_up, B_w_down):
    def _A_ref(x, wqkv, w_phi, wo):
        B, S, D = x.shape
        H = 32; Dh = D // H
        qkv = (lambda x, *d: x.permute(*d))((x @ wqkv).reshape(B, S, 3, H, Dh), 2, 0, 3, 1, 4)
        q, k, v = qkv[0], qkv[1], qkv[2]
        pq = torch.einsum("bhsd,hdf->bhsf", q, w_phi)
        pk = torch.einsum("bhsd,hdf->bhsf", k, w_phi)
        phi_q = torch.concatenate([_softmax(pq, axis=-1), _softmax(-pq, axis=-1)], axis=-1)
        phi_k = torch.concatenate([_softmax(pk, axis=-1), _softmax(-pk, axis=-1)], axis=-1)
        kv = torch.einsum("bhsf,bhsd->bhfd", phi_k, v)
        z  = torch.einsum("bhsf->bhf", phi_k)
        num = torch.einsum("bhqf,bhfd->bhqd", phi_q, kv)
        den = torch.einsum("bhqf,bhf->bhq", phi_q, z)[..., None] + 1e-6
        o = num / den
        return (lambda x, *d: x.permute(*d))(o, 0, 2, 1, 3).reshape(B, S, D) @ wo

    def _B_ref(x, w_gate, w_up, w_down):
        return (_gelu(x @ w_gate) * (x @ w_up)) @ w_down

    x = A_x
    x = x + _A_ref(_layernorm(x, axis=-1), A_wqkv, A_w_phi, A_wo)
    x = x + _B_ref(_layernorm(x, axis=-1), B_w_gate, B_w_up, B_w_down)
    x = x + _A_ref(_layernorm(x, axis=-1), A_wqkv, A_w_phi, A_wo)
    x = x + _B_ref(_layernorm(x, axis=-1), B_w_gate, B_w_up, B_w_down)
    return x
```

```python
import re

TRANS = ("v_exp_f32", "v_log_f32", "v_rcp_f32", "v_rsq_f32", "v_sqrt_f32", "v_sin_f32", "v_cos_f32", "v_rcp_iflag_f32")
RE_REG = re.compile(r"^(-|abs\()?\|?([vas])(?:(\d+)|\[(\d+):(\d+)\])\|?\)?$")

def regs_of(op):
    op = op.strip()
    if op in ("vcc", "exec", "m0", "scc"): return {op}
    if op in ("vcc_lo", "vcc_hi"): return {"vcc"}
    if op in ("exec_lo", "exec_hi"): return {"exec"}
    m = RE_REG.match(op)
    if not m: return set()
    k = m.group(2)
    if m.group(3) is not None: return {f"{k}{m.group(3)}"}
    return {f"{k}{i}" for i in range(int(m.group(4)), int(m.group(5)) + 1)}

class Ins:
    __slots__ = ("text", "mn", "dst", "src", "cls", "passes", "srcA", "srcC", "data", "ws")
    def __init__(self, text):
        self.text = text
        t = text.split(";")[0].strip()
        parts = t.split(None, 1)
        mn = parts[0]; self.mn = mn
        rest = parts[1] if len(parts) > 1 else ""
        mods = re.findall(r"\s(\w+:\[[^\]]*\])", rest)
        rest = re.sub(r"\s\w+:\[[^\]]*\]", "", rest)
        ops = [o.strip() for o in rest.split(",")] if rest else []
        if ops:
            last = ops[-1].split()
            if mn.startswith(("s_waitcnt", "s_nop", "s_getreg", "s_setreg")): last = [ops[-1]]
            if last:
                ops[-1] = last[0]; mods += last[1:]
        R = [regs_of(o) for o in ops]
        U = lambda l: set().union(*l) if l else set()
        self.dst = set(); self.src = set(); self.passes = 0; self.srcA = set(); self.srcC = set(); self.data = set()
        self.ws = 1
        if mn == "s_nop":
            self.cls = "nop"; self.ws = int(ops[0], 0) + 1
        elif mn.startswith("v_mfma"):
            self.cls = "mfma"; self.passes = 8 if "32x32x16" in mn else 4
            assert "32x32x16" in mn or "16x16x32" in mn
            self.dst = R[0]; self.srcA = R[1] | R[2]; self.srcC = R[3]; self.src = self.srcA | self.srcC | {"exec"}
        elif mn.startswith(("buffer_load", "global_load")):
            self.cls = "vm"
            if "lds" in mods: self.src = U(R) | {"m0"}; self.cls = "vmlds"
            else:
                self.dst = R[0]; self.src = U(R[1:])
                if "d16" in mn: self.src |= R[0]
        elif mn.startswith("buffer_store"):
            self.cls = "vmst"; self.src = U(R); self.data = R[0]
        elif mn.startswith("global_store"):
            self.cls = "vmst"; self.src = U(R); self.data = R[1]
        elif mn.startswith("buffer_atomic"):
            self.cls = "vmst"; self.src = U(R)
            if "sc0" in mods: self.dst = R[0]; self.cls = "vm"
        elif mn in ("buffer_wbl2", "buffer_inv"):
            self.cls = "vmst"
        elif mn.startswith("ds_read") or mn.startswith(("ds_bpermute", "ds_permute", "ds_swizzle")):
            self.cls = "ds"; self.dst = R[0]; self.src = U(R[1:])
        elif mn.startswith("ds_"):
            self.cls = "dsw"; self.src = U(R)
        elif mn.startswith(("s_load", "s_memtime", "s_memrealtime")):
            self.cls = "smem"; self.dst = R[0]; self.src = U(R[1:])
        elif mn.startswith("v_"):
            self.cls = "trans" if mn.replace("_e32", "").replace("_e64", "") in TRANS else "valu"
            if mn.startswith("v_cmpx"): self.dst = R[0] | {"exec"}; self.src = U(R[1:])
            elif mn.startswith("v_permlane") : self.dst = R[0] | R[1]; self.src = R[0] | R[1]
            elif "_co_" in mn: self.dst = R[0] | R[1]; self.src = U(R[2:])
            elif mn == "v_nop": pass
            else:
                self.dst = R[0]; self.src = U(R[1:])
                if mn.startswith(("v_fmac", "v_dot2c", "v_pk_fmac", "v_writelane")) or "dpp" in mn or "sdwa" in mn or any(x.startswith("op_sel:") for x in mods) and "pk" not in mn:
                    self.src |= R[0]
            if any(m_.startswith(("row_", "quad_perm", "wave_")) for m_ in mods): self.cls = "dpp"; self.src |= R[0]
        elif mn.startswith("s_"):
            self.cls = "salu"
            if mn.startswith(("s_cmp", "s_bitcmp")): self.src = U(R); self.dst = {"scc"}
            elif mn.startswith(("s_waitcnt", "s_barrier", "s_branch", "s_endpgm", "s_setprio", "s_sleep", "s_sethalt")): pass
            elif mn.startswith("s_cbranch"):
                self.src = {"scc"} if "scc" in mn else {"vcc"} if "vcc" in mn else {"exec"}
            elif "saveexec" in mn: self.dst = R[0] | {"exec", "scc"}; self.src = U(R[1:]) | {"exec"}
            elif mn.startswith(("s_setpc",)): self.src = U(R)
            else:
                self.dst = R[0] | {"scc"}; self.src = U(R[1:])
                if mn.startswith(("s_mov", "s_movk", "s_getreg", "s_getpc", "s_mul_i32", "s_mul_hi", "s_cselect", "s_bfm")): self.dst = R[0]
                if mn.startswith(("s_addk", "s_mulk")): self.src |= R[0]
                if mn.startswith(("s_cselect", "s_addc", "s_subb", "s_cmov")): self.src |= {"scc"}
        else:
            raise ValueError("unknown instruction: " + text)

def isv(r): return r[0] in "va" and r not in ("vcc",)
VALUISH = ("valu", "trans", "dpp")
def need_ws(p, c):
    n = 0
    pv = p.cls in VALUISH
    cv = c.cls in VALUISH
    cmem = c.cls in ("vm", "vmlds", "vmst", "ds", "dsw")
    if pv:
        vd = {r for r in p.dst if isv(r)}
        sd = p.dst - vd
        if c.cls == "mfma" and vd & c.src: n = max(n, 2)
        if c.cls == "mfma" and "exec" in sd: n = max(n, 4)
        if c.mn.startswith("v_permlane"):
            if vd & c.src: n = max(n, 2)
            if "exec" in sd: n = max(n, 4)
        if c.cls == "dpp":
            if vd & c.src: n = max(n, 2)
            if "exec" in sd: n = max(n, 5)
        if c.mn.startswith(("v_readlane", "v_readfirstlane")):
            if vd & c.src: n = max(n, 1)
            if "exec" in sd or (sd & c.src): n = max(n, 4)
        if c.cls in ("vm", "vmlds", "vmst") and (sd - {"exec"}) & c.src: n = max(n, 5)
        if cv and (sd - {"exec"}) & c.src: n = max(n, 2)
        if c.cls == "salu" and (sd & c.src): n = max(n, 1)
        if c.mn.startswith("s_cbranch") and (sd & c.src): n = max(n, 1)
        if p.cls == "trans" and (cv or c.cls == "mfma" or cmem) and vd & (c.src | c.dst): n = max(n, 1)
        if ("sdwa" in p.text or "op_sel:" in p.text and "pk" not in p.mn) and cv and vd & (c.src | c.dst): n = max(n, 1)
        if p.mn.startswith("v_dot2") and (vd & (c.src | c.dst)):
            if not (c.mn == p.mn and not (vd & (c.src - c.dst))): n = max(n, 3)
    if p.cls == "mfma":
        big = {4: 8, 8: 12}[p.passes]
        if c.cls == "mfma":
            if p.dst & c.srcA: n = max(n, big)
            if p.dst & c.srcC and not (p.dst == c.srcC and p.passes == c.passes): n = max(n, {4: 6, 8: 10}[p.passes])
            if p.dst & c.dst and not (p.dst == c.srcC and p.passes == c.passes): n = max(n, {4: 6, 8: 10}[p.passes])
        elif (cv or cmem) and p.dst & (c.src | c.dst): n = max(n, big)
        if cv and p.srcC & c.dst: n = max(n, {4: 3, 8: 7}[p.passes])
        if c.cls in ("vm", "ds") and p.srcC & c.dst: n = max(n, {4: 3, 8: 7}[p.passes])
    if p.cls == "vmst" and len(p.data) >= 3 and p.data & c.dst:
        n = max(n, 2)
    if p.cls == "dsw" and c.dst & {r for r in p.src if isv(r)} and len(p.src) >= 4 and cv:
        n = max(n, 1)
    if p.cls == "salu" and "m0" in p.dst and c.cls == "vmlds": n = max(n, 1)
    if p.cls == "salu" and "exec" in p.dst and c.cls == "dpp": n = max(n, 1)
    return n

class KB:
    def __init__(self):
        self.out = []
        self.hist = []
        self.vm = []
        self.lg = []
        self.nid = 0
        self.uid = 0
        self.nops = 0
        self.gapstat = []
        self._gap = 0
        self.count = 0
        self.maxv = 0; self.maxa = -1; self.maxs = 0
    def raw(self, s): self.out.append(s)
    def comment(self, s): self.out.append("    ; " + s)
    def newlabel(self, base="L"):
        self.uid += 1; return f"{base}_{self.uid}"
    def label(self, name):
        self.out.append(name + ":")
    def _push(self, ins):
        self.out.append("    " + ins.text)
        self.hist.append(ins)
        if len(self.hist) > 24: self.hist.pop(0)
        self.count += 1
        if ins.cls == "mfma": self.gapstat.append(self._gap); self._gap = 0
        else: self._gap += (2 if ins.cls == "trans" else ins.ws)
    def _wait(self, vmn=None, lgn=None):
        parts = []
        if vmn is not None:
            vmn = min(vmn, 63)
            if vmn < len(self.vm): parts.append(f"vmcnt({vmn})"); self.vm = self.vm[len(self.vm) - vmn:]
        if lgn is not None:
            lgn = min(lgn, 15)
            if lgn < len(self.lg):
                if any(x[2] for x in self.lg): lgn = 0
                parts.append(f"lgkmcnt({lgn})"); self.lg = self.lg[len(self.lg) - lgn:]
        if parts: self._push(Ins("s_waitcnt " + " ".join(parts)))
    def wait_vm(self, tok):
        for i, e in enumerate(self.vm):
            if e[0] == tok: self._wait(vmn=len(self.vm) - 1 - i); return
    def wait_lg(self, tok):
        for i, e in enumerate(self.lg):
            if e[0] == tok: self._wait(lgn=len(self.lg) - 1 - i); return
    def wait2(self, vtok=None, ltok=None):
        vn = ln = None
        for i, e in enumerate(self.vm):
            if e[0] == vtok: vn = len(self.vm) - 1 - i
        for i, e in enumerate(self.lg):
            if e[0] == ltok: ln = len(self.lg) - 1 - i
        self._wait(vn, ln)
    def pending(self, tok): return any(e[0] == tok for e in self.vm) or any(e[0] == tok for e in self.lg)
    def untracked(self, text):
        vm, lg = list(self.vm), list(self.lg)
        self(text)
        self.vm, self.lg = vm, lg
    def wait_all(self, vm=True, lg=True):
        self._wait(vmn=0 if vm else None, lgn=0 if lg else None)
    def force_wait(self, vm=False, lg=False):
        p = []
        if vm: p.append("vmcnt(0)"); self.vm = []
        if lg: p.append("lgkmcnt(0)"); self.lg = []
        self._push(Ins("s_waitcnt " + " ".join(p)))
    def pending_vm(self, tok): return any(e[0] == tok for e in self.vm)
    def __call__(self, text):
        tok = None
        for l in text.strip().split("\n"):
            l = l.strip()
            if not l or l.startswith(";"): continue
            if l.endswith(":"): self.label(l[:-1]); continue
            tok = self.I(l)
        return tok
    def I(self, text):
        ins = Ins(text)
        if ins.mn == "s_waitcnt":
            m = re.search(r"vmcnt\((\d+)\)", text)
            if m: self.vm = self.vm[max(0, len(self.vm) - int(m.group(1))):]
            m = re.search(r"lgkmcnt\((\d+)\)", text)
            if m: self.lg = self.lg[max(0, len(self.lg) - int(m.group(1))):]
        for r in ins.dst | ins.src:
            if r[0] == "v" and r != "vcc": self.maxv = max(self.maxv, int(r[1:]))
            elif r[0] == "a": self.maxa = max(self.maxa, int(r[1:]))
            elif r[0] == "s" and r != "scc": self.maxs = max(self.maxs, int(r[1:]))
        touch = ins.src | ins.dst
        vmn = lgn = None
        for i, e in enumerate(self.vm):
            hit = e[1] & (ins.src if ins.cls == "vm" and "d16" not in ins.mn else touch)
            if ins.cls == "vm" and "d16" in ins.mn: hit = e[1] & (ins.src - ins.dst)
            if hit: vmn = len(self.vm) - 1 - i
        for i, e in enumerate(self.lg):
            hit = e[1] & (ins.src if (ins.cls == "ds" and not e[2]) else touch)
            if hit: lgn = len(self.lg) - 1 - i
        self._wait(vmn, lgn)
        need = 0; dist = 0
        for p in reversed(self.hist):
            n = need_ws(p, ins)
            if n - dist > need: need = n - dist
            dist += p.ws
            if dist >= 20: break
        if need > 0:
            self.nops += need
            self._push(Ins(f"s_nop {need - 1}"))
        self._push(ins)
        self.nid += 1
        if ins.cls in ("vm", "vmlds", "vmst"):
            self.vm.append((self.nid, ins.dst))
            if len(self.vm) > 63: self.vm = self.vm[-63:] if False else self.vm
        elif ins.cls in ("ds", "dsw"): self.lg.append((self.nid, ins.dst, False))
        elif ins.cls == "smem": self.lg.append((self.nid, ins.dst, True))
        return self.nid
    def flush_hazards(self, n=12):
        self._push(Ins(f"s_nop {n-1}"))

def weave(k, spine, side, per_gap=None, start=0):
    def em(x):
        return x() if callable(x) else k(x)
    nm = sum(1 for x in spine if isinstance(x, str) and x.lstrip().startswith("v_mfma"))
    side = list(side)
    tot = len(side); done = 0; seen = 0
    for x in spine:
        em(x)
        if isinstance(x, str) and x.lstrip().startswith("v_mfma"):
            seen += 1
            if seen <= start: continue
            if per_gap is None: tgt = (tot * (seen - start) + (nm - start) - 1) // max(nm - start, 1)
            else: tgt = min(tot, done + per_gap)
            while done < min(tgt, tot): em(side[done]); done += 1
    while done < tot: em(side[done]); done += 1

class Module:
    def __init__(self):
        self.head = []; self.body = []; self.kds = []
    def launch(self, kernel, grid, block, lds):
        self.head.append(f"; @launch kernel={kernel} grid=({grid},1,1) block=({block},1,1) lds={lds}")
    def add(self, name, k, vgpr=None, agpr=None, sgpr=None):
        v = vgpr if vgpr is not None else k.maxv + 1
        ag = agpr if agpr is not None else k.maxa + 1
        sg = sgpr if sgpr is not None else max(k.maxs + 1, 16)
        acc = max(4, (v + 3) // 4 * 4)
        nfv = acc + ag if ag else v
        self.body += [".text", f".globl {name}", ".p2align 8", f".type {name},@function", f"{name}:"] + k.out
        self.kds.append([f".amdhsa_kernel {name}",
                     f"  .amdhsa_next_free_vgpr {nfv}",
                     f"  .amdhsa_next_free_sgpr {sg}",
                     f"  .amdhsa_accum_offset {acc}",
                     "  .amdhsa_group_segment_fixed_size 0",
                     "  .amdhsa_kernarg_size 88",
                     "  .amdhsa_user_sgpr_count 2",
                     "  .amdhsa_user_sgpr_kernarg_segment_ptr 1",
                     "  .amdhsa_system_sgpr_workgroup_id_x 1",
                     "  .amdhsa_float_denorm_mode_32 3",
                     ".end_amdhsa_kernel"])
    def text(self, pre=""):
        out = []
        if pre: out.append(pre.rstrip("\n"))
        out += self.head
        out.append('.amdgcn_target "amdgcn-amd-amdhsa--gfx950"')
        out += self.body
        out.append('.section .rodata,"a"')
        for kd in self.kds:
            out.append(".p2align 6"); out += kd
        return "\n".join(out) + "\n"
```

```python
import os
INPLACE = int(os.environ.get('INPLACE', '1'))
KB_ = 1024
S, D, F, H, DH = 2048, 640, 1728, 32, 20
off = 0
def alloc(n, al=4096):
    global off
    off = (off + al - 1) // al * al
    o = off; off += n; return o
WQ   = alloc(16 * 160 * KB_)
WO   = alloc(8 * 100 * KB_)
WD   = alloc(8 * 270 * KB_)
CQ   = alloc(64 * 32 * 8 * 4)
CG   = alloc(112 * 32 * 4 * 4)
WG   = alloc(16 * 280 * KB_)
WG_VALID = (15 * 280 + 120) * KB_
XFSZ = 64 * 40 * KB_
XF   = [alloc(XFSZ)] * 4 if INPLACE else [alloc(XFSZ) for _ in range(4)]
STSZ = 64 * 8 * 256
ST   = [alloc(STSZ)] * 4 if INPLACE else [alloc(STSZ) for _ in range(4)]
OFSZ = 128 * 20 * KB_
OF   = [alloc(OFSZ)] * 2 if INPLACE else [alloc(OFSZ) for _ in range(2)]
HFSZ = 128 * 54 * KB_
HF   = [alloc(HFSZ)] * 2 if INPLACE else [alloc(HFSZ) for _ in range(2)]
SYNC = alloc(0, 8192)
FX   = [alloc(64 * 128, 128) for _ in range(4)]
FO   = [alloc(32 * 128, 128) for _ in range(2)]
FH   = [alloc(32 * 128, 128) for _ in range(2)]
XCC  = alloc(8 * 128, 128)
KVS  = 3456
KVP  = [alloc(256 * KVS, 128) for _ in range(2)]
SYNC_END = alloc(0, 8192)
SYNC_WGS = (SYNC_END - SYNC) // 8192
DBG  = 0x3800000
WS_SIZE = 0x4000000
assert off <= WS_SIZE
OOB = 0x40000000

def pix_inv(s, hh, e):
    cb, u = divmod(s, 5)
    if u < 2: g, v = 2 * u + hh, e
    elif u < 4: g, v = 2 * (u - 2) + hh, 8 + e
    else: g, v = 2 * hh + (e >> 2), 16 + (e & 3)
    return 80 * cb + 20 * g + v
def pio_inv(ks, g, e):
    c = 4 * ks + g; hp, u = divmod(c, 5)
    if u < 2: h, d = 2 * hp + u, e
    elif u < 4: h, d = 2 * hp + u - 2, 8 + e
    else: h, d = 2 * hp + (e >> 2), 16 + (e & 3)
    return 20 * h + d
def q_stream(s, T): return s * 2 + T if T < 2 else 40 * T + s
def g_stream(s, T): return s * 2 + T if T < 2 else 40 * T + s
if __name__ == "__main__":
    print({k: hex(v) if isinstance(v, int) else v for k, v in globals().items() if k.isupper()})
    assert sorted(pix_inv(s, hh, e) for s in range(40) for hh in range(2) for e in range(8)) == list(range(640))
    assert sorted(pio_inv(s, g, e) for s in range(20) for g in range(4) for e in range(8)) == list(range(640))
```

```python
import sys
from kb import KB
import lay as L
def warm_kernel(name, shift, what):
    k = KB()
    k(f"""s_cmp_ge_u32 s2, 256
    s_cbranch_scc1 {name}_end
    s_load_dwordx16 s[36:51], s[0:1], 0
    s_load_dwordx2 s[52:53], s[0:1], 80
    s_load_dwordx2 s[54:55], s[0:1], 64
    s_lshr_b32 s3, s2, 3
    s_lshl_b32 s3, s3, 8
    v_add_u32 v1, s3, v0
    v_lshlrev_b32 v1, {shift}, v1""")
    bufs = []
    if "i" in what: bufs += [(36, 2621440), (38, 2457600), (42, 819200), (46, 2211840), (48, 2211840), (50, 2211840)]
    if "w" in what: bufs += [(52, L.SYNC_END)]
    if "o" in what: bufs += [(54, 2621440)]
    for i, (p, n) in enumerate(bufs):
        k(f"s_mov_b32 s8, s{p}\ns_mov_b32 s9, s{p+1}\ns_mov_b32 s10, {n}\ns_mov_b32 s11, 0x20000\nbuffer_load_dword v{2+i}, v1, s[8:11], 0 offen")
    k.wait_all()
    k(f"{name}_end:\ns_endpgm")
    return k
s = open(sys.argv[1]).read()
lp = [l for l in s.split("\n") if l.startswith("; @launch kernel=prep")][0]
lm = [l for l in s.split("\n") if l.startswith("; @launch kernel=inter")][0]
def var(fn, order, shift=12, what=""):
    lx = "; @launch kernel=warm_kernel grid=(256,1,1) block=(256,1,1) lds=0"
    t = s.replace(lp + "\n" + lm, "\n".join({"p": lp, "m": lm, "x": lx}[c] for c in order))
    if "x" in order:
        k = warm_kernel("warm_kernel", shift, what)
        code = ".text\n.globl warm_kernel\n.p2align 8\n.type warm_kernel,@function\nwarm_kernel:\n" + "\n".join(k.out) + "\n"
        kd = """.p2align 6
.amdhsa_kernel warm_kernel
  .amdhsa_next_free_vgpr 16
  .amdhsa_next_free_sgpr 64
  .amdhsa_accum_offset 16
  .amdhsa_group_segment_fixed_size 0
  .amdhsa_kernarg_size 88
  .amdhsa_user_sgpr_count 2
  .amdhsa_user_sgpr_kernarg_segment_ptr 1
  .amdhsa_system_sgpr_workgroup_id_x 1
.end_amdhsa_kernel
"""
        t = t.replace('.section .rodata,"a"', code + '.section .rodata,"a"') + kd
    open(fn, "w").write(t)
var("x0.s", "xpm", 12, "")
var("x1.s", "xpm", 12, "iwo")
var("x2.s", "xpm", 16, "iwo")
var("x3.s", "pmpm")
var("x4.s", "ppm")
```

```python
import sys
from kb import KB
import lay as L
def warm_kernel(name, shift, what):
    k = KB()
    k(f"""s_cmp_ge_u32 s2, 256
    s_cbranch_scc1 {name}_end
    s_load_dwordx16 s[36:51], s[0:1], 0
    s_load_dwordx2 s[52:53], s[0:1], 80
    s_load_dwordx2 s[54:55], s[0:1], 64
    s_lshr_b32 s3, s2, 3
    s_lshl_b32 s3, s3, 8
    v_add_u32 v1, s3, v0
    v_lshlrev_b32 v1, {shift}, v1""")
    bufs = []
    if "i" in what: bufs += [(36, 2621440), (38, 2457600), (42, 819200), (46, 2211840), (48, 2211840), (50, 2211840)]
    if "w" in what: bufs += [(52, L.SYNC_END)]
    if "o" in what: bufs += [(54, 2621440)]
    for i, (p, n) in enumerate(bufs):
        k(f"s_mov_b32 s8, s{p}\ns_mov_b32 s9, s{p+1}\ns_mov_b32 s10, {n}\ns_mov_b32 s11, 0x20000\nbuffer_load_dword v{2+i}, v1, s[8:11], 0 offen")
    k.wait_all()
    k(f"{name}_end:\ns_endpgm")
    return k
s = open(sys.argv[1]).read()
lp = [l for l in s.split("\n") if l.startswith("; @launch kernel=prep")][0]
lm = [l for l in s.split("\n") if l.startswith("; @launch kernel=inter")][0]
def var(fn, order, shift=12, what=""):
    lx = "; @launch kernel=warm_kernel grid=(256,1,1) block=(256,1,1) lds=0"
    t = s.replace(lp + "\n" + lm, "\n".join({"p": lp, "m": lm, "x": lx}[c] for c in order))
    if "x" in order:
        k = warm_kernel("warm_kernel", shift, what)
        code = ".text\n.globl warm_kernel\n.p2align 8\n.type warm_kernel,@function\nwarm_kernel:\n" + "\n".join(k.out) + "\n"
        kd = """.p2align 6
.amdhsa_kernel warm_kernel
  .amdhsa_next_free_vgpr 16
  .amdhsa_next_free_sgpr 64
  .amdhsa_accum_offset 16
  .amdhsa_group_segment_fixed_size 0
  .amdhsa_kernarg_size 88
  .amdhsa_user_sgpr_count 2
  .amdhsa_user_sgpr_kernarg_segment_ptr 1
  .amdhsa_system_sgpr_workgroup_id_x 1
.end_amdhsa_kernel
"""
        t = t.replace('.section .rodata,"a"', code + '.section .rodata,"a"') + kd
    open(fn, "w").write(t)
var("x0.s", "xpm", 12, "")
var("x1.s", "xpm", 12, "iwo")
var("x2.s", "xpm", 16, "iwo")
var("x3.s", "pmpm")
var("x4.s", "ppm")
def stream_kernel(name, n):
    k = KB()
    k(f"""s_cmp_ge_u32 s2, 256
    s_cbranch_scc1 {name}_end
    s_load_dwordx2 s[52:53], s[0:1], 80
    s_lshr_b32 s3, s2, 3
    s_and_b32 s3, s3, 15
    s_mul_i32 s3, s3, {n*4096}
    v_lshlrev_b32 v1, 4, v0
    s_mov_b32 s8, s52
    s_mov_b32 s9, s53
    s_mov_b32 s10, {L.XF[0]}
    s_mov_b32 s11, 0x20000""")
    for i in range(n):
        r = 4 + 4 * (i % 16)
        if i >= 16: k("s_waitcnt vmcnt(15)")
        k(f"buffer_load_dwordx4 v[{r}:{r+3}], v1, s[8:11], s3 offen\ns_add_u32 s3, s3, 4096")
    k.wait_all()
    k(f"{name}_end:\ns_endpgm")
    return k
def var2(fn, order, n):
    lx = "; @launch kernel=warm_kernel grid=(256,1,1) block=(256,1,1) lds=163840"
    t = s.replace(lp + "\n" + lm, "\n".join({"p": lp, "m": lm, "x": lx}[c] for c in order))
    k = stream_kernel("warm_kernel", n)
    code = ".text\n.globl warm_kernel\n.p2align 8\n.type warm_kernel,@function\nwarm_kernel:\n" + "\n".join(k.out) + "\n"
    kd = """.p2align 6
.amdhsa_kernel warm_kernel
  .amdhsa_next_free_vgpr 128
  .amdhsa_next_free_sgpr 64
  .amdhsa_accum_offset 128
  .amdhsa_group_segment_fixed_size 0
  .amdhsa_kernarg_size 88
  .amdhsa_user_sgpr_count 2
  .amdhsa_user_sgpr_kernarg_segment_ptr 1
  .amdhsa_system_sgpr_workgroup_id_x 1
.end_amdhsa_kernel
"""
    t = t.replace('.section .rodata,"a"', code + '.section .rodata,"a"') + kd
    open(fn, "w").write(t)
var2("y0.s", "pmx", 1); var2("y1.s", "pmx", 150); var2("y2.s", "pmxx", 150); var2("y3.s", "pxm", 150); var2("y4.s", "pxxm", 150)
```
